```python
import torch

def _softmax(x, axis=-1):
    return torch.softmax(x, dim=axis)
def _gelu(x):
    return torch.nn.functional.gelu(x, approximate="tanh")
def _silu(x):
    return torch.nn.functional.silu(x)
def _sigmoid(x):
    return torch.sigmoid(x)
def _layernorm(x, axis=-1, eps=1e-5):
    m = x.mean(dim=axis, keepdim=True)
    v = x.var(dim=axis, keepdim=True, unbiased=False)
    return (x - m) / torch.sqrt(v + eps)
def _scatter_add(tgt, idx, src, axis=0):
    return tgt.clone().index_add_(axis, idx, src)
def _segment_sum(src, seg, n):
    out = torch.zeros((n,) + src.shape[1:], dtype=src.dtype)
    return out.index_add_(0, seg, src)
def _pad(x, pw):
    flat = tuple(v for pair in reversed(pw) for v in pair)
    return torch.nn.functional.pad(x, flat)

kernel_name = 'sequential_preLN__mha_block_cached__mixer_token_mlp__decode'

def setup_inputs():

    _w = (lambda a: (lambda t: t.to(torch.bfloat16) if t.is_floating_point() else t)(torch.as_tensor(a)))
    def _A_setup():
        B, Sq, D = 4, 1, 640
        H, Sk, Dh = 32, 4096, 192
        return {
            "x": _w((lambda *s: torch.randn(*s, dtype=torch.bfloat16) * 0.05)(B, Sq, D)),
            "k_cache": _w((lambda *s: torch.randn(*s, dtype=torch.bfloat16) * 1.6)(B, H, Sk, Dh)),
            "v_cache": _w((lambda *s: torch.randn(*s, dtype=torch.bfloat16) * 0.8)(B, H, Sk, Dh)),
            "wq": _w((lambda *s: torch.randn(*s, dtype=torch.bfloat16) * 1.6)(D, H * Dh) * (D ** -0.5)),
            "wo": _w((lambda *s: torch.randn(*s, dtype=torch.bfloat16) * 0.8)(H * Dh, D) * ((H * Dh) ** -0.5)),
        }
    _A_in = _A_setup()

    def _B_setup():
        B, S, D, F = 4, 1, 640, 1536
        return {
            "x": _w((lambda *s: torch.randn(*s, dtype=torch.bfloat16) * 0.05)(B, S, D)),
            "w1": _w((lambda *s: torch.randn(*s, dtype=torch.bfloat16) * 3.2)(S, F) * (S ** -0.5)),
            "b1": _w((lambda *s: torch.randn(*s, dtype=torch.bfloat16) * 3.2)(F) * 0.02),
            "w2": _w((lambda *s: torch.randn(*s, dtype=torch.bfloat16) * 0.4)(F, S) * (F ** -0.5)),
            "b2": _w((lambda *s: torch.randn(*s, dtype=torch.bfloat16) * 0.4)(S) * 0.02),
        }
    _B_in = _B_setup()

    return {
        "A_x": _A_in["x"],
        "A_k_cache": _A_in["k_cache"],
        "A_v_cache": _A_in["v_cache"],
        "A_wq": _A_in["wq"],
        "A_wo": _A_in["wo"],
        "B_x": _B_in["x"],
        "B_w1": _B_in["w1"],
        "B_b1": _B_in["b1"],
        "B_w2": _B_in["w2"],
        "B_b2": _B_in["b2"],
    }

def reference(A_x, A_k_cache, A_v_cache, A_wq, A_wo, B_x, B_w1, B_b1, B_w2, B_b2):
    def _A_ref(x, k_cache, v_cache, wq, wo):
        B, Sq, D = x.shape
        H, Dh = 32, 192
        q = (lambda x, *d: x.permute(*d))((x @ wq).reshape(B, Sq, H, Dh), 0, 2, 1, 3)
        scores = torch.einsum("bhqd,bhkd->bhqk", q, k_cache) * (Dh ** -0.5)
        p = _softmax(scores, axis=-1)
        o = torch.einsum("bhqk,bhkd->bhqd", p, v_cache)
        return (lambda x, *d: x.permute(*d))(o, 0, 2, 1, 3).reshape(B, Sq, H * Dh) @ wo

    def _B_ref(x, w1, b1, w2, b2):
        B, S, D = x.shape
        h = _layernorm(x, axis=-1)
        u = torch.einsum("bsd,sf->bdf", h, w1) + b1
        u = _gelu(u)
        y = torch.einsum("bdf,fs->bds", u, w2) + b2
        return (lambda x, *d: x.permute(*d))(y, 0, 2, 1)

    x = A_x
    h = x + _A_ref(_layernorm(x, axis=-1), A_k_cache, A_v_cache, A_wq, A_wo)
    h2 = h + _B_ref(_layernorm(h, axis=-1), B_w1, B_b1, B_w2, B_b2)
    return h2
```

```python
import re, sys

def regs(tok):
    tok = tok.strip().lstrip("-")
    m = re.fullmatch(r"abs\((.*)\)", tok)
    if m: tok = m.group(1)
    m = re.fullmatch(r"([vas])(\d+)", tok)
    if m: return {(m.group(1), int(m.group(2)))}
    m = re.fullmatch(r"([vas])\[(\d+):(\d+)\]", tok)
    if m: return {(m.group(1), i) for i in range(int(m.group(2)), int(m.group(3)) + 1)}
    if tok == "vcc": return {("s", "vcc_lo"), ("s", "vcc_hi")}
    if tok in ("vcc_lo", "vcc_hi", "m0"): return {("s", tok)}
    return set()

TRANS = ("v_exp_f32", "v_log_f32", "v_rcp_f32", "v_rsq_f32", "v_sqrt_f32", "v_sin_f32", "v_cos_f32")
class I:
    def __init__(s, line, no):
        s.line = line; s.no = no
        p = line.split(None, 1); s.op = p[0]
        rest = p[1] if len(p) > 1 else ""
        toks = [t.strip() for t in rest.split(",")]
        if toks: toks[-1:] = toks[-1].split()[:1] if toks[-1] else []
        s.toks = toks
        op = s.op
        s.valu = op.startswith("v_") and not op.startswith(("v_mfma", "v_smfmac"))
        s.mfma = op.startswith(("v_mfma", "v_smfmac"))
        s.dot = op.startswith("v_dot")
        s.dpp = "_dpp" in op
        s.vmem = op.startswith(("buffer_", "global_"))
        s.ds = op.startswith("ds_")
        s.w = set(); s.r = set(); s.ab = set(); s.c = set(); s.sdata = set()
        R = [regs(t) for t in toks]
        if s.mfma:
            s.w = R[0]; s.ab = R[1] | R[2]
            if op.startswith("v_smfmac"): s.c = R[0]; s.ab |= R[3]
            else: s.c = R[3]
            s.r = s.ab | s.c
        elif s.valu:
            s.w = set(R[0]); s.r = set().union(*R[1:]) if len(R) > 1 else set()
            if op.startswith(("v_fmac", "v_dot2c", "v_writelane")) or s.dpp: s.r |= R[0]
            if "permlane" in op: s.w |= R[1]; s.r |= R[0]
            if op.startswith("v_cndmask") and len(toks) == 3: s.r |= regs("vcc")
        elif s.vmem:
            if "load" in op or ("atomic" in op and " sc0" in line):
                s.w = R[0]; s.r = set().union(*R[1:])
            else:
                s.r = set().union(*R)
                d = R[0] if op.startswith("buffer_") else R[1]
                if op.endswith(("x3", "x4")): s.sdata = d
        elif s.ds:
            if "read" in op or "rtn" in op: s.w = R[0]; s.r = set().union(*R[1:])
            else: s.r = set().union(*R)
        s.ws = 1
        if op == "s_nop": s.ws = int(toks[0], 0) + 1

def need(p, c):
    n = 0; why = ""
    def up(k, w):
        nonlocal n, why
        if k > n: n, why = k, w
    pv = {x for x in p.w if x[0] in "va"}; ps = {x for x in p.w if x[0] == "s"}
    if p.valu:
        if c.dpp and pv & c.r: up(2, "valu->dpp")
        if c.op.startswith(("v_readlane", "v_readfirstlane")) and pv & c.r: up(1, "valu->readlane")
        if "permlane" in c.op and pv & c.r: up(2, "valu->permlane")
        if c.mfma and pv & c.r: up(2, "valu->mfma")
        if p.op.startswith(TRANS) and c.valu and not c.op.startswith(TRANS) and pv & c.r: up(1, "trans->valu")
        if ps:
            if c.valu and ps & c.r:
                if c.op.startswith(("v_readlane", "v_writelane")) and ps & regs(c.toks[2]): up(4, "valu sgpr->lane select")
                else: up(2, "valu sgpr->valu")
            if c.vmem and ps & c.r: up(5, "valu sgpr->vmem")
        if p.dot:
            if c.op == p.op:
                if pv & (regs(c.toks[1]) | regs(c.toks[2])): up(3, "dot->dot ab")
            elif (c.valu or c.mfma or c.vmem or c.ds) and pv & (c.r | c.w): up(3, "dot->other")
    if p.mfma:
        if c.mfma:
            if pv & c.ab: up(8, "mfma->mfma ab")
            if pv & c.c and pv != c.c: up(6, "mfma->mfma c overlap")
        elif (c.valu or c.vmem or c.ds) and pv & (c.r | c.w): up(8, "mfma->valu/mem")
        if c.valu and p.c & c.w: up(3, "mfma srcC WAR")
    if p.sdata and (c.valu or c.vmem or c.ds) and p.sdata & c.w: up(2 if c.valu else 1, "store data WAR")
    return n, why

def check(path):
    ins = []; labels = {}
    for no, ln in enumerate(open(path), 1):
        ln = ln.split(";")[0].strip()
        if not ln or ln.startswith("."): continue
        if ln.endswith(":"): labels[ln[:-1]] = len(ins); continue
        ins.append(I(ln, no))
    preds = [[] for _ in ins]
    for i, x in enumerate(ins):
        if x.op not in ("s_branch", "s_endpgm") and i + 1 < len(ins): preds[i + 1].append(i)
        if x.op == "s_branch" or x.op.startswith("s_cbranch"):
            preds[labels[x.toks[0]]].append(i)
    bad = 0
    for i, c in enumerate(ins):
        stack = [(j, 0) for j in preds[i]]; seen = set()
        while stack:
            j, d = stack.pop()
            if (j, d) in seen or d >= 8: continue
            seen.add((j, d))
            n, why = need(ins[j], c)
            if n > d:
                bad += 1; print(f"{path}:{c.no}: {why} needs {n} has {d}: [{ins[j].no}] {ins[j].line}  ->  {c.line}")
            for k in preds[j]: stack.append((k, d + ins[j].ws))
    print(path, "instructions", len(ins), "violations", bad)
    return bad
if __name__ == "__main__":
    for p in sys.argv[1:]: check(p)
```

```python
import sys, struct
from asmlib import *

NAME = "sequential_preLN__mha_block_cached__mixer_token_mlp__decode_kernel"
KV_BYTES = 201326592
W_BYTES = 640 * 6144 * 2
WS = 805306368
HEADER = open("sequential_preLN__mha_block_cached__mixer_token_mlp__decode.s.ref").read().split("; Override launch")[0]
LOG2E = 1.4426950408889634
def fx(x): return hex(struct.unpack("<I", struct.pack("<f", x))[0])

WS_PART = 0
WS_EP = 0x60000
WS_TBL = 0x68000
WS_ML = 0x70000
WS_QP = 0x80000
WS_USED = WS_QP + 4 * 5 * 6144 * 4
MAG0 = (127 - 19) << 7
OSTR = 784
L_OBUF = 0
L_QFIN = 12544
L_FLG = 13056
L_ST = 13120
L_MLW = 13184
L_TB = 13312
L_LN = 14336
L_PO = 16384
POSTR = 2560 + 16
L_RS = L_PO + 8 * POSTR
L_TBL = L_RS + 8 * 2560
LDS_BYTES = L_TBL + 24576

DOC = """; ---------------------------------------------------------------------------------------------------------------
; ---------------------------------------------------------------------------------------------------------------
"""

class VM:
    def __init__(self, a): self.a = a; self.ops = []
    def issue(self, tag): self.ops.append(tag)
    def wait(self, tag):
        if tag not in self.ops: return
        idx = max(i for i, t in enumerate(self.ops) if t == tag)
        n = len(self.ops) - 1 - idx
        assert n <= 63
        self.a(f"s_waitcnt vmcnt({n})")
        self.ops = self.ops[idx + 1:]
    def done(self, tag): return tag not in self.ops

def gen(path, D=5, DA=4, fk_lo=0, fk_hi=0, spr=(0, 1), lam0=4, lam=((0, 4), (0.16, 3), (0.9, 4), (0.95, 8)), wo_end=50,
        rot=(7, 21, 11), poll_at=None, t_tl=17, spin_max=200000, stamps=False, force_fb=False, arr_all=False, wo_pf=-2, wo_beg=None, hst='sc1', hld='sc1', fine=True, code_pf=False):
    a = Asm(); vm = VM(a)
    vK, vV, vM, vWo, vQ, vS, vD, vA, vT, vB = 1, 2, 3, 7, 8, 20, 52, 64, 72, 76
    assert vB + 12 * D <= 136
    ACC = 136
    sW, sH, sBt, sS, sP, sKo, sVo = 3, 60, 61, 62, 63, 64, 65
    sBeg, sEnd, sWo = 14, 15, 30
    RK, RV, RWQ, RWO, RWS, RX = 32, 36, 40, 44, 48, 52
    sML, sPART, sM, sC = 56, 57, 58, 59
    sT = 66
    sST = 80
    sE, sTA, sTB, sTb, sRed = 96, 98, 99, 100, 101
    S = [vS + i for i in range(32)]
    nst = [0]
    def stamp():
        if stamps:
            a(f"s_memrealtime s[{sST+2*nst[0]}:{sST+2*nst[0]+1}]"); nst[0] += 1
    def pr(r): return f"v[{r}:{r+1}]"
    ROW4 = ["quad_perm:[1,0,3,2]", "quad_perm:[2,3,0,1]", "row_half_mirror", "row_mirror"]
    def dpp(op, r, ctl, rm="0xf"): return f"{op}_dpp v{r}, v{r}, v{r} {ctl} row_mask:{rm} bank_mask:0xf"
    def dpp_stages(op, regs, stages):
        for ctl, rm in stages:
            if len(regs) < 3: a(f"s_nop {2 - len(regs)}")
            for r in regs: a(dpp(op, r, ctl, rm))
    def reduce_to63(op, regs, start=0):
        dpp_stages(op, regs, ([(c, "0xf") for c in ROW4] + [("row_bcast:15", "0xa"), ("row_bcast:31", "0xc")])[start:])
    def row_allreduce(op, regs): dpp_stages(op, regs, [(c, "0xf") for c in ROW4])
    def rnd_bf16(r): a(f"v_cvt_pk_bf16_f32 v{r}, v{r}, v{r}\nv_and_b32 v{r}, 0xffff0000, v{r}")
    def rnd_bf16_pair(r0, r1, t): a(f"v_cvt_pk_bf16_f32 v{t}, v{r0}, v{r1}\nv_lshlrev_b32 v{r0}, 16, v{t}\nv_and_b32 v{r1}, 0xffff0000, v{t}")
    def spin_guard(retry, go, mult=1):
        a(f"s_add_u32 s{sT+8}, s{sT+8}, 1\ns_cmp_lt_u32 s{sT+8}, {spin_max*mult}\ns_cbranch_scc1 {retry}\n{go}:")
    def build_A(dst, P):
        for r in range(4): a(f"v_and_b32 v{dst+r}, v{P}, v{vM+r}")
    def den_chain(r):
        rnd_bf16(r); a(f"v_add_f32 v{r}, {fx(1e-5)}, v{r}"); rnd_bf16(r)
        a(f"v_sqrt_f32 v{r}, v{r}\ns_nop 0"); rnd_bf16(r); a(f"v_rcp_f32 v{r}, v{r}")
    def tree(base, stride, pairs):
        for st in (4, 2, 1):
            for w in range(st):
                for i in pairs:
                    a(f"v_pk_add_f32 {pr(base+stride*w+i)}, {pr(base+stride*w+i)}, {pr(base+stride*(w+st)+i)}")

    M = 192; nxt = [0]; cur_lam = [None]; NPRE = D + DA; arrived0 = [0]
    def buf(n):
        if n < D: return ("v", vB + 12 * n)
        if n < NPRE: return ("a", 16 + 12 * (n - D))
        return ("v", vB + 12 * ((n - DA) % D))
    def prev_occ(n):
        if n < NPRE: return -1
        return n - D if n - D >= NPRE else n - D - DA
    def lam_at(i):
        if cur_lam[0] is not None: return cur_lam[0]
        v = [l for fr, l in lam if i / M >= fr][-1]
        return v[i % len(v)] if isinstance(v, tuple) else v
    def issue1(m):
        n, j = divmod(m, 3)
        f, r = buf(n)
        if n < 32: a(f"buffer_load_dwordx4 {f}[{r+4*j}:{r+4*j+3}], v{vK}, s[{RK}:{RK+3}], s{sKo} offen offset:{128*j} nt")
        else:      a(f"buffer_load_dwordx4 {f}[{r+4*j}:{r+4*j+3}], v{vV}, s[{RV}:{RV+3}], s{sVo} offen offset:{256*j} nt")
        vm.issue(("ld", m))
        if j == 2 and n not in (31, 63):
            so = sKo if n < 32 else sVo
            a(f"s_add_u32 s{so}, s{so}, 3072\ns_cmp_eq_u32 s{so}, s{sEnd}\ns_cselect_b32 s{so}, s{sBeg}, s{so}")
    def fill(arrived, consumed, cap=None):
        while nxt[0] < M and nxt[0] - arrived < lam_at(arrived) and prev_occ(nxt[0] // 3) < consumed and (cap is None or nxt[0] < cap):
            issue1(nxt[0]); nxt[0] += 1
    def wait_group(n):
        for i in range(3 * n, 3 * n + 3):
            vm.wait(("ld", i)); fill(max(i + 1, arrived0[0]), n)
    def wo_prefetch():
        a.c("pull this workgroup's eighth of the head's wo rows into L2 now; the register loads later hit there")
        a(f"""
        s_lshl1_add_u32 s{sT}, s{sBt}, s{sS}
        s_lshl3_add_u32 s{sT}, s{sT}, s{sW}
        s_mul_i32 s{sT}, s{sT}, 3840
        s_mul_i32 s{sT+1}, s{sH}, 245760
        s_add_u32 s{sT}, s{sT}, s{sT+1}
        v_lshlrev_b32 v{vT}, 4, v0
        """)
        for k in range(4):
            a(f"buffer_load_dwordx4 a[{104+4*k}:{107+4*k}], v{vT}, s[{RWO}:{RWO+3}], s{sT} offen offset:{min(1024*k, 2816)}"); vm.issue("wpf")
    def paced_fill():
        cur_lam[0] = lam0; fill(0, 0); i = 0
        while nxt[0] < 3 * NPRE:
            vm.wait(("ld", i)); i += 1
            fill(i, 0)
        return i

    sKq, sCb = sT + 10, sT + 11
    vG, vN = vT + 2, vT + 3
    X = vS
    a.c("q production: block g' = (g&63)*4 + b -> rows 128*kq.., columns 128*cb.. of wq (g' >= 240: nothing to produce)")
    a(f"""
    s_cmp_ge_u32 s2, 256
    s_cbranch_scc1 L_end
    s_load_dwordx2 s[{RWQ}:{RWQ+1}], s[0:1], 24
    s_load_dwordx2 s[{RX}:{RX+1}], s[0:1], 0
    s_load_dwordx2 s[{RK}:{RK+1}], s[0:1], 8
    s_load_dwordx2 s[28:29], s[0:1], 96
    s_load_dwordx2 s[{RWO}:{RWO+1}], s[0:1], 32
    """)
    stamp()
    a(f"""
    v_lshrrev_b32 v1, 6, v0
    v_and_b32 v0, 63, v0
    v_readfirstlane_b32 s{sW}, v1
    s_lshr_b32 s{sBt}, s2, 6
    s_and_b32 s{sRed}, s2, 63
    s_lshl2_add_u32 s{sCb}, s{sRed}, s{sBt}
    s_mul_i32 s{sKq}, s{sCb}, 1366
    s_lshr_b32 s{sKq}, s{sKq}, 16
    s_mul_i32 s{sT}, s{sKq}, 48
    s_sub_u32 s{sCb}, s{sCb}, s{sT}
    v_lshrrev_b32 v{vG}, 4, v0
    v_and_b32 v{vN}, 15, v0
    v_mul_u32_u24 v{vA}, {4*12288}, v{vG}
    v_lshl_add_u32 v{vA}, v{vN}, 4, v{vA}
    s_lshl3_add_u32 s{sT}, s{sKq}, s{sW}
    s_mul_i32 s{sT+13}, s{sT}, {16*12288}
    s_lshl_b32 s{sT+1}, s{sCb}, 8
    s_add_u32 s{sT+13}, s{sT+13}, s{sT+1}
    s_mov_b32 s{RWQ+2}, {W_BYTES}
    s_mov_b32 s{RWQ+3}, 0x20000
    v_lshlrev_b32 v{vA+1}, 4, v0
    v_lshlrev_b32 v{vA+2}, 2, v0
    s_mul_i32 s{sT+12}, s{sW}, 1280
    s_lshl_b32 s{sT+4}, s{sKq}, 8
    s_add_u32 s{sT+4}, s{sT+4}, s{sT+12}
    s_movk_i32 s{RX+2}, 5120
    s_mov_b32 s{RX+3}, s{RWQ+3}
    s_cmp_ge_u32 s{sW}, 4
    s_waitcnt lgkmcnt(0)
    s_cbranch_scc1 L_nox
    buffer_load_dwordx4 v[{X}:{X+3}], v{vA+1}, s[{RX}:{RX+3}], s{sT+12} offen
    buffer_load_dword v{X+4}, v{vA+2}, s[{RX}:{RX+3}], s{sT+12} offen offset:1024
    buffer_load_dword v{X+5}, v{vA+2}, s[{RX}:{RX+3}], s{sT+4} offen
    L_nox:
    """)
    vm.issue("x")
    for t in range(4):
        a(f"buffer_load_dwordx4 a[{4*t}:{4*t+3}], v{vA}, s[{RWQ}:{RWQ+3}], s{sT+13} offen nt"); vm.issue("wq")
        if t < 3: a(f"s_add_u32 s{sT+13}, s{sT+13}, 12288")
    a.c("h = 4*(g&7) + ((g>>3)&3), s = (g>>5)&1, b = g>>6: the 8 workgroups of a head share an XCD (speed only)")
    a(f"""
    s_load_dwordx2 s[{RV}:{RV+1}], s[0:1], 16
    s_load_dwordx4 s[16:19], s[0:1], 48
    s_load_dwordx4 s[20:23], s[0:1], 64
    s_load_dwordx2 s[24:25], s[0:1], 80
    s_load_dwordx2 s[{sE}:{sE+1}], s[28:29], {WS_EP}
    v_lshrrev_b32 v{vK}, 3, v0
    v_mul_u32_u24 v{vK}, 384, v{vK}
    v_and_b32 v{vT}, 7, v0
    v_lshl_add_u32 v{vK}, v{vT}, 4, v{vK}
    s_and_b32 s{sT+2}, s2, 7
    s_bfe_u32 s{sT}, s2, 0x20003
    s_lshl2_add_u32 s{sH}, s{sT+2}, s{sT}
    s_bfe_u32 s{sS}, s2, 0x10005
    s_lshl1_add_u32 s{sP}, s{sH}, s{sS}
    s_lshl_b32 s{sT}, s{sBt}, 6
    s_add_u32 s{sT}, s{sT}, s{sP}
    s_lshl3_add_u32 s{sT}, s{sT}, s{sW}
    s_mul_i32 s{sBeg}, s{sT}, 98304
    s_add_u32 s{sEnd}, s{sBeg}, 98304
    s_mul_i32 s{sT+1}, s{sW}, {rot[0]}
    s_mul_i32 s{sT+2}, s{sT+2}, {rot[1]}
    s_add_u32 s{sT+1}, s{sT+1}, s{sT+2}
    s_lshr_b32 s{sT+2}, s2, 3
    s_mul_i32 s{sT+2}, s{sT+2}, {rot[2]}
    s_add_u32 s{sT+1}, s{sT+1}, s{sT+2}
    s_and_b32 s{sT+1}, s{sT+1}, 31
    s_mul_i32 s{sT+1}, s{sT+1}, 3072
    s_add_u32 s{sKo}, s{sBeg}, s{sT+1}
    s_mov_b32 s{sVo}, s{sKo}
    s_mov_b32 s{RK+2}, {KV_BYTES}
    s_mov_b32 s{RK+3}, 0x20000
    s_mov_b32 s{RWO+2}, {W_BYTES}
    s_mov_b32 s{RWO+3}, 0x20000
    """)
    if wo_pf == -2: wo_prefetch()
    if code_pf:
        a.c("pull the rest of this kernel's code into L2 (1 KiB per workgroup of an XCD)")
        a(f"""
        s_cmp_lg_u32 s{sW}, 7
        s_cbranch_scc1 L_nopf
        s_getpc_b64 s[{sT+2}:{sT+3}]
        L_pc:
        s_and_b32 s{sT+5}, s2, 0xf8
        s_lshl_b32 s{sT+5}, s{sT+5}, 7
        v_add_u32 v{vT}, s{sT+5}, v{vA+1}
        v_min_u32 v{vT}, L_end-L_pc-12, v{vT}
        global_load_dwordx4 a[100:103], v{vT}, s[{sT+2}:{sT+3}]
        L_nopf:
        """)
    if stamps:
        for i in range(2, 16, 2): a(f"s_mov_b64 s[{sST+i}:{sST+i+1}], s[{sST}:{sST+1}]")
    cur_lam[0] = 99
    fill(0, 0, cap=3 * fk_lo)
    vQa, vLa = vA + 7, vA + 6
    a(f"""
    v_mul_u32_u24 v{vV}, 768, v{vG}
    v_lshl_add_u32 v{vV}, v{vN}, 4, v{vV}
    v_lshrrev_b32 v{vWo}, 1, v{vG}
    v_lshl_add_u32 v{vWo}, v{vWo}, 2, v{vG}
    v_mul_u32_u24 v{vWo}, 1280, v{vWo}
    v_lshl_add_u32 v{vWo}, v{vN}, 4, v{vWo}
    v_and_b32 v{vT+1}, 1, v0
    v_lshlrev_b32 v{vT+1}, 4, v{vT+1}
    v_mov_b32 v{vA+3}, 0xffff
    v_lshlrev_b32 v{vT+1}, v{vT+1}, v{vA+3}
    s_mov_b32 s{sT+6}, 0x03030303
    s_mov_b32 s{sT+7}, 0x03030303
    """)
    for r in range(4):
        a(f"v_cndmask_b32 v{vM+r}, 0, v{vT+1}, s[{sT+6}:{sT+7}]")
        if r < 3: a(f"s_lshl_b64 s[{sT+6}:{sT+7}], s[{sT+6}:{sT+7}], 2")
    a(f"""
    s_mov_b32 s{RV+2}, {KV_BYTES}
    s_mov_b32 s{RV+3}, 0x20000
    s_mov_b32 s{RWS}, s28
    s_mov_b32 s{RWS+1}, s29
    s_mov_b32 s{RWS+2}, {WS_USED}
    s_mov_b32 s{RWS+3}, 0x20000
    v_lshrrev_b32 v{vQa}, 5, v0
    v_lshlrev_b32 v{vQa}, 9, v{vQa}
    v_lshl_add_u32 v{vQa}, v{vN}, 5, v{vQa}
    v_and_b32 v{vT}, 1, v{vG}
    v_lshl_add_u32 v{vQa}, v{vT}, 4, v{vQa}
    s_lshl_b32 s{sT}, s{sW}, 11
    v_add_u32 v{vQa}, s{sT}, v{vQa}
    v_bfe_u32 v{vLa}, v0, 3, 1
    v_lshlrev_b32 v{vLa}, 8, v{vLa}
    v_lshl_add_u32 v{vLa}, v{vG}, 3, v{vLa}
    s_lshl_b32 s{sT}, s{sW}, 5
    v_add_u32 v{vLa}, s{sT}, v{vLa}
    s_mov_b32 s{sT+8}, 0x01000100
    s_mov_b32 s{sT+9}, 0x03020302
    s_lshl_b32 s{sT}, s{sBt}, 6
    s_add_u32 s{sT}, s{sT}, s{sP}
    s_mul_i32 s{sPART}, s{sT}, 1280
    s_lshl_b32 s{sT}, s{sT}, 7
    s_add_u32 s{sML}, s{sT}, {WS_ML}
    s_mul_i32 s{sWo}, s{sH}, 192
    s_mul_i32 s{sWo+1}, s{sW}, 24
    s_add_u32 s{sWo}, s{sWo}, s{sWo+1}
    s_mul_i32 s{sWo}, s{sWo}, 1280
    s_sub_u32 s{sRed}, s{sRed}, s{sBt}
    s_cmp_eq_u32 s{sRed}, 60
    s_cselect_b32 s{sRed}, 1, 0
    s_cmp_ge_u32 s{sW}, 4
    s_cbranch_scc1 L_pathH
    """)
    common_ops = [o for o in vm.ops if o != "x"]; common_nxt = nxt[0]
    def amfma(extra=0):
        Yr = vS + 24
        a(f"s_barrier\nds_read_b64 {pr(Yr)}, v{vLa} offset:{L_LN}\nds_read_b64 {pr(Yr+2)}, v{vLa} offset:{L_LN+512}")
        if wo_pf == -3: wo_prefetch()
        fill(0, 0, cap=nxt[0] + 3 * extra)
        a("s_waitcnt lgkmcnt(0)")
        Y = [[vS + 16 + 4 * bp + t for t in range(4)] for bp in range(2)]
        for bp in range(2):
            for t in range(4):
                a(f"v_perm_b32 v{Y[bp][t]}, v{Yr+2*bp+t//2}, v{Yr+2*bp+t//2}, s{sT+8+t%2}")
        AQ = [vS + 8, vS + 12]
        order = [(t, bp) for t in range(4) for bp in range(2)]
        build_A(AQ[0], Y[0][0])
        vm.wait("wq")
        fill(0, 0, cap=nxt[0] + 3 * spr[1])
        for i, (t, bp) in enumerate(order):
            if i < 7: build_A(AQ[(i + 1) % 2], Y[order[i+1][1]][order[i+1][0]])
            else: a("s_nop 0")
            c = "0" if t == 0 else f"v[{vD+4*bp}:{vD+4*bp+3}]"
            a(f"v_mfma_f32_16x16x32_bf16 v[{vD+4*bp}:{vD+4*bp+3}], v[{AQ[i%2]}:{AQ[i%2]+3}], a[{4*t}:{4*t+3}], {c}")
        a(f"""
        s_mul_i32 s{sTA}, s{sE}, 0x9E3779B1
        s_add_u32 s{sTA}, s{sTA}, 0x7F4A7C15
        s_xor_b32 s{sTB}, s{sE+1}, s{sTA}
        s_mul_i32 s{sTB}, s{sTB}, 0x85EBCA6B
        s_add_u32 s{sTB}, s{sTB}, 0x27D4EB2F
        s_nop 2
        ds_write_b128 v{vQa}, v[{vD}:{vD+3}] offset:{L_PO}
        ds_write_b128 v{vQa}, v[{vD+4}:{vD+7}] offset:{L_PO+1024}
        """)
        if wo_pf == -1: wo_prefetch()
        a("s_waitcnt lgkmcnt(0)\ns_barrier")
    a.c("waves 0..3: LayerNorm statistics of batch w and the 128 normalised inputs this workgroup needs")
    v1s, v2s, vOne, y0, y1 = X + 6, X + 7, X + 8, X + 10, X + 11
    a(f"v_mov_b32 v{v1s}, 0\nv_mov_b32 v{v2s}, 0\nv_mov_b32 v{vOne}, 0x3f803f80\ns_lshl_b32 s{sT}, s{sW}, 8\nv_add_u32 v{vA+2}, s{sT}, v{vA+2}")
    vm.wait("x")
    for k in range(5):
        a(f"v_dot2c_f32_bf16 v{v1s}, v{X+k}, v{vOne}\nv_dot2c_f32_bf16 v{v2s}, v{X+k}, v{X+k}")
    a(f"v_lshlrev_b32 v{y0}, 16, v{X+5}\nv_and_b32 v{y1}, 0xffff0000, v{X+5}\nv_mov_b32 v{X+9}, {fx(1.0/640)}")
    reduce_to63("v_add_f32", [v1s, v2s])
    a(f"""
    v_readlane_b32 s{sT}, v{v1s}, 63
    v_readlane_b32 s{sT+1}, v{v2s}, 63
    s_nop 0
    v_mul_f32 v{v1s}, s{sT}, v{X+9}
    v_mul_f32 v{v2s}, s{sT+1}, v{X+9}
    v_fma_f32 v{v2s}, -v{v1s}, v{v1s}, v{v2s}
    v_max_f32 v{v2s}, 0, v{v2s}
    """)
    rnd_bf16(v1s); den_chain(v2s)
    a(f"v_sub_f32 v{y0}, v{y0}, v{v1s}\nv_sub_f32 v{y1}, v{y1}, v{v1s}")
    rnd_bf16_pair(y0, y1, X)
    a(f"""
    v_mul_f32 v{y0}, v{y0}, v{v2s}
    v_mul_f32 v{y1}, v{y1}, v{v2s}
    v_cvt_pk_bf16_f32 v{y0}, v{y0}, v{y1}
    ds_write_b32 v{vA+2}, v{y0} offset:{L_LN}
    s_waitcnt lgkmcnt(0)
    """)
    amfma(spr[0])
    a(f"""
    s_cmp_ge_u32 s{sKq}, 5
    s_cbranch_scc1 L_qpub_done
    s_cmp_ge_u32 s{sW}, 2
    s_cbranch_scc1 L_qpub_done
    s_lshl_b32 s{sT}, s{sW}, 10
    v_add_u32 v{vT}, s{sT}, v{vA+1}
    """)
    for w in range(8): a(f"ds_read_b128 v[{vS+4*w}:{vS+4*w+3}], v{vT} offset:{L_PO + 2048*w}")
    a(f"""
    s_mul_i32 s{sT}, s{sW}, 10
    s_add_u32 s{sT}, s{sT}, s{sKq}
    s_mul_i32 s{sT}, s{sT}, {6144*4}
    s_lshl_b32 s{sT+1}, s{sCb}, 9
    s_add_u32 s{sT}, s{sT}, s{sT+1}
    s_add_u32 s{sT}, s{sT}, {WS_QP}
    v_lshrrev_b32 v{vT+1}, 5, v0
    v_mul_u32_u24 v{vT+1}, {5*6144*4 - 512}, v{vT+1}
    v_add_u32 v{vT+1}, v{vT+1}, v{vA+1}
    v_mov_b32 v{vT+2}, s{sTA}
    s_waitcnt lgkmcnt(0)
    """)
    tree(vS, 4, (0, 2))
    for i in range(4): a(f"s_mov_b32 s{sT+1}, {hex(0x07060500 + i)}\nv_perm_b32 v{vS+i}, v{vS+i}, v{vT+2}, s{sT+1}")
    a(f"buffer_store_dwordx4 v[{vS}:{vS+3}], v{vT+1}, s[{RWS}:{RWS+3}], s{sT} offen sc1\nL_qpub_done:")
    arr = paced_fill()
    a("s_branch L_qbar")
    a("L_pathH:")
    vm.ops = list(common_ops); nxt[0] = common_nxt; cur_lam[0] = 99
    fill(0, 0, cap=3 * fk_hi)
    a(f"v_mov_b32 v{vT}, 0\nv_mov_b32 v{vT+1}, 0\nds_write_b64 v{vT}, {pr(vT)} offset:{L_FLG}\ns_waitcnt lgkmcnt(0)")
    amfma()
    a(f"s_cmp_eq_u32 s{sW}, 4\ns_cbranch_scc1 L_qpoll")
    saved_ops = list(vm.ops); saved_nxt = nxt[0]
    arr2 = paced_fill()
    a("s_branch L_qbar")
    a("L_qpoll:")
    vm.ops = list(saved_ops); nxt[0] = saved_nxt
    P = vS
    a.c("reset this workgroup's output row to the sentinel (complete at the vmcnt(0) below, before the barrier)")
    a(f"""
    v_mov_b32 v{vD}, -1
    v_mov_b32 v{vD+1}, -1
    v_mov_b32 v{vD+2}, -1
    v_mov_b32 v{vD+3}, -1
    buffer_store_dwordx4 v[{vD}:{vD+3}], v{vA+1}, s[{RWS}:{RWS+3}], s{sPART} offen sc1
    s_mov_b64 exec, 0xffff
    buffer_store_dwordx4 v[{vD}:{vD+3}], v{vA+1}, s[{RWS}:{RWS+3}], s{sPART} offen offset:1024 sc1
    s_mov_b64 exec, -1
    v_min_u32 v{vT+1}, 47, v0
    v_lshlrev_b32 v{vT+1}, 4, v{vT+1}
    s_mul_i32 s{sT}, s{sBt}, {5*6144*4}
    s_mul_i32 s{sT+1}, s{sH}, {192*4}
    s_add_u32 s{sT}, s{sT}, s{sT+1}
    s_add_u32 s{sT}, s{sT}, {WS_QP}
    s_mov_b32 s{sT+8}, 0
    """)
    for i in range(4): a(f"s_bfe_u32 s{sT+4+i}, s{sTA}, {hex(0x80000 + 8*i)}")
    def q_loads():
        for k in range(5):
            a(f"s_add_u32 s{sT+2}, s{sT}, {6144*4*k}\nbuffer_load_dwordx4 v[{P+4*k}:{P+4*k+3}], v{vT+1}, s[{RWS}:{RWS+3}], s{sT+2} offen sc1")
    if poll_at is None:
        cur_lam[0] = 99; fill(0, 0)
    else:
        keep = lam0; lam0 = poll_at; paced_fill(); lam0 = keep
    a("L_q_retry:"); q_loads(); a("s_waitcnt vmcnt(0)")
    a(f"v_mov_b32 v{vA}, 0")
    for k in range(0, 20, 2):
        a(f"v_xor_b32 v{P+k}, s{sT+4+k%4}, v{P+k}\nv_xor_b32 v{P+k+1}, s{sT+5+k%4}, v{P+k+1}\nv_or3_b32 v{vA}, v{vA}, v{P+k}, v{P+k+1}")
    a(f"v_and_b32 v{vA}, 0xff, v{vA}\nv_cmp_ne_u32 vcc, 0, v{vA}\ns_cbranch_vccz L_q_ok")
    spin_guard("L_q_retry", "L_q_ok")
    for k in range(1, 5):
        for o in (0, 2): a(f"v_pk_add_f32 {pr(P+o)}, {pr(P+o)}, {pr(P+4*k+o)}")
    a(f"""
    v_cvt_pk_bf16_f32 v{P}, v{P}, v{P+1}
    v_cvt_pk_bf16_f32 v{P+1}, v{P+2}, v{P+3}
    v_lshrrev_b32 v{vT+1}, 1, v{vT+1}
    ds_write_b64 v{vT+1}, {pr(P)} offset:{L_QFIN}
    s_waitcnt lgkmcnt(0)
    L_qbar:
    v_and_b32 v{vT}, 7, v0
    v_lshlrev_b32 v{vT}, 4, v{vT}
    s_barrier
    """)
    first_unknown = min(arr, arr2)
    arrived0[0] = 3 * NPRE if arr_all else first_unknown
    vm.ops = [("ld", m) for m in range(first_unknown, 3 * NPRE)]
    cur_lam[0] = None
    for j in range(3): a(f"ds_read_b128 v[{vQ+4*j}:{vQ+4*j+3}], v{vT} offset:{L_QFIN + 128*j}")
    a("s_waitcnt lgkmcnt(0)")
    stamp()

    wo_n = [0]; wo_at = {}
    for k in range(30):
        wb = NPRE if wo_beg is None else wo_beg
        n = wb + (k * (wo_end - wb)) // 29
        wo_at[n] = wo_at.get(n, 0) + 1
    def wo_hook(n):
        for _ in range(wo_at.get(n, 0)):
            k = wo_n[0]; wo_n[0] += 1
            m_, cb, hf = k // 10, (k % 10) // 2, k % 2
            a(f"s_add_u32 s{sWo+1}, s{sWo}, {(12*hf + 2*m_) * 1280}")
            a(f"buffer_load_dwordx4 a[{4*k}:{4*k+3}], v{vWo}, s[{RWO}:{RWO+3}], s{sWo+1} offen offset:{cb*256}")
            vm.issue("wo")
    cA = -2.0 * 0.7978845608028654 * LOG2E
    TW = vD; tTmp, tC, tAcc, tU = vD + 9, vD + 10, vA, vA + 4
    vTa = S[29]; sTt = sT + 10
    def gelu_pair(u, z, tsrc, k, acc, first):
        def sel(r): return pr(r & ~1), r & 1
        def rnd(): return [f"v_cvt_pk_bf16_f32 v{z}, v{u}, v{u+1}", f"v_lshlrev_b32 v{u}, 16, v{z}", f"v_and_b32 v{u+1}, 0xffff0000, v{z}"]
        (p1, s1_), (p2, s2_), (p3, s3_) = sel(TW + k), sel(TW + 3 + k), sel(TW + 6 + k)
        return ([f"v_pk_mul_f32 {pr(u)}, {tsrc}, {p1} op_sel:[0,{s1_}] op_sel_hi:[1,{s1_}]"] + rnd() +
                [f"v_pk_add_f32 {pr(u)}, {pr(u)}, {p2} op_sel:[0,{s2_}] op_sel_hi:[1,{s2_}]"] + rnd() +
                [f"v_pk_mul_f32 {pr(z)}, {pr(u)}, {pr(u)}",
                 f"v_pk_fma_f32 {pr(z)}, {pr(z)}, {pr(tC)}, {pr(tC)} op_sel:[0,1,0] op_sel_hi:[1,1,0]",
                 f"v_pk_mul_f32 {pr(z)}, {pr(z)}, {pr(u)}",
                 f"v_exp_f32 v{z}, v{z}", f"v_exp_f32 v{z+1}, v{z+1}",
                 f"v_pk_add_f32 {pr(z)}, {pr(z)}, 1.0 op_sel_hi:[1,0]",
                 f"v_rcp_f32 v{z}, v{z}", f"v_rcp_f32 v{z+1}, v{z+1}",
                 f"v_pk_mul_f32 {pr(u)}, {pr(u)}, {pr(z)}"] + rnd() +
                [f"v_pk_mul_f32 {pr(acc)}, {pr(u)}, {p3} op_sel:[0,{s3_}] op_sel_hi:[1,{s3_}]" if first else
                 f"v_pk_fma_f32 {pr(acc)}, {pr(u)}, {p3}, {pr(acc)} op_sel:[0,{s3_},0] op_sel_hi:[1,{s3_},1]"])
    def score_post(r):
        return [dpp("v_add_f32", r, c) for c in ROW4[:3]] + [
            f"v_cvt_pk_bf16_f32 v{r}, v{r}, v{r}", f"v_and_b32 v{r}, 0xffff0000, v{r}", f"v_mul_f32 v{r}, {fx(192 ** -0.5)}, v{r}",
            f"v_cvt_pk_bf16_f32 v{r}, v{r}, v{r}", f"v_and_b32 v{r}, 0xffff0000, v{r}"]
    n_tw, n_t0 = NPRE, 16
    assert n_t0 > n_tw + 2
    def table_hook(n):
        if n == n_tw:
            a(f"s_mul_i32 s{sT+9}, s{sW}, 384\nv_lshl_add_u32 v{tTmp}, v0, 1, s{sT+9}")
            for k in range(3):
                for i, sp in enumerate((16, 18, 20)):
                    a(f"global_load_ushort v{TW+3*i+k}, v{tTmp}, s[{sp}:{sp+1}] offset:{128*k}"); vm.issue("mw")
        if n == n_t0:
            vm.wait("mw")
            for r in range(9): a(f"v_lshlrev_b32 v{TW+r}, 16, v{TW+r}")
            a(f"""
            v_mov_b32 v{tC}, {fx(cA)}
            v_mov_b32 v{tC+1}, {fx(cA * 0.044715)}
            v_bfe_u32 v{vTa}, v0, 4, 1
            v_lshrrev_b32 v{tTmp}, 5, v0
            v_lshlrev_b32 v{vTa}, 3, v{vTa}
            v_lshl_add_u32 v{vTa}, v{tTmp}, 2, v{vTa}
            s_lshl_b32 s{sT}, s{sW}, 7
            v_add_u32 v{vTa}, s{sT}, v{vTa}
            s_and_b32 s{sTb}, s2, 127
            s_mul_i32 s{sTb}, s{sTb}, 24
            s_add_u32 s{sTb}, s{sTb}, {MAG0}
            s_lshl_b32 s{sTb}, s{sTb}, 16
            s_lshr_b32 s{sT}, s2, 7
            s_lshl_b32 s{sT}, s{sT}, 31
            s_or_b32 s{sTb}, s{sTb}, s{sT}
            """)
        if n_t0 <= n < n_t0 + 12:
            bt, half = divmod(n - n_t0, 2)
            if half == 0:
                a.c(f"MLP table entries {4*bt}..{4*bt+3} of this workgroup, this wave's 192 hidden units")
                for i in range(4): a(f"s_add_u32 s{sTt+i}, s{sTb}, {(4*bt+i) << 16}")
                if bt == 5: a(f"s_cmp_eq_u32 s2, 127\ns_cselect_b32 s{sTt+3}, 0, s{sTt+3}")
            for k in ((0, 1) if half == 0 else (2,)):
                l0 = gelu_pair(tU, tU + 2, f"s[{sTt}:{sTt+1}]", k, tAcc, k == 0)
                l1 = gelu_pair(tU + 4, tU + 6, f"s[{sTt+2}:{sTt+3}]", k, tAcc + 2, k == 0)
                for x, y in zip(l0, l1): a(x); a(y)
            if half == 1:
                a(f"""
                s_nop 1
                v_permlane32_swap_b32 v{tAcc}, v{tAcc+1}
                v_permlane32_swap_b32 v{tAcc+2}, v{tAcc+3}
                v_add_f32 v{tAcc}, v{tAcc}, v{tAcc+1}
                v_add_f32 v{tAcc+2}, v{tAcc+2}, v{tAcc+3}
                s_nop 1
                v_permlane16_swap_b32 v{tAcc}, v{tAcc+2}
                v_add_f32 v{tAcc}, v{tAcc}, v{tAcc+2}
                """)
                row_allreduce("v_add_f32", [tAcc])
                a(f"s_mov_b32 exec_lo, 0x00010001\ns_mov_b32 exec_hi, 0x00010001\nds_write_b32 v{vTa}, v{tAcc} offset:{L_TB + 16*bt}\ns_mov_b64 exec, -1")
        if n == n_t0 + 11:
            a.c("the wave that arrives last sums the 8 partials, adds b2 and publishes the tagged line")
            a(f"""
            v_mov_b32 v{tU}, 0
            v_mov_b32 v{tU+1}, 1
            s_load_dword s{sT+1}, s[22:23], 0
            s_waitcnt lgkmcnt(0)
            s_mov_b64 exec, 1
            ds_add_rtn_u32 v{tU+2}, v{tU}, v{tU+1} offset:{L_FLG}
            s_waitcnt lgkmcnt(0)
            s_mov_b64 exec, -1
            v_readfirstlane_b32 s{sT}, v{tU+2}
            s_cmp_lg_u32 s{sT}, 7
            s_cbranch_scc1 L_tfin_skip
            v_lshlrev_b32 v{tTmp}, 2, v0
            s_mov_b32 exec_hi, 0
            """)
            for w in range(8): a(f"ds_read_b32 v{TW+w}, v{tTmp} offset:{L_TB + 128*w}")
            a(f"""
            s_lshl_b32 s{sT+1}, s{sT+1}, 16
            s_lshl_b32 s{sT}, s2, 7
            s_add_u32 s{sT}, s{sT}, {WS_TBL}
            v_and_b32 v{tU}, 1, v0
            v_lshlrev_b32 v{tU}, 4, v{tU}
            v_lshrrev_b32 v{tU}, v{tU}, s{sTA}
            v_and_b32 v{tU}, 0xffff, v{tU}
            s_waitcnt lgkmcnt(0)
            """)
            for st in (4, 2, 1):
                for w in range(st): a(f"v_add_f32 v{TW+w}, v{TW+w}, v{TW+w+st}")
            rnd_bf16(TW)
            a(f"""
            v_add_f32 v{TW}, s{sT+1}, v{TW}
            v_cvt_pk_bf16_f32 v{TW}, v{TW}, v{TW}
            v_lshl_or_b32 v{TW}, v{TW}, 16, v{tU}
            buffer_store_dword v{TW}, v{tTmp}, s[{RWS}:{RWS+3}], s{sT} offen sc1
            s_mov_b64 exec, -1
            L_tfin_skip:
            """)
    for n in range(32):
        a.c(f"K group {n}")
        a(f"v_mov_b32 v{S[n]}, 0")
        wait_group(n)
        f, r = buf(n)
        if f == "a":
            for j in range(12): a(f"v_accvgpr_read_b32 v{vD+j}, a{r+j}")
            r = vD
        post = score_post(S[n - 1]) if n else []
        for j in range(12):
            a(f"v_dot2c_f32_bf16 v{S[n]}, v{r+j}, v{vQ+j}")
            if post and j in (1, 3, 5, 7, 8, 9, 10, 11): a(post.pop(0))
        fill(max(3 * n + 3, arrived0[0]), n + 1)
        if wo_pf == n: wo_prefetch()
        wo_hook(n); table_hook(n)
    stamp()
    a.c("wave maximum of the scores")
    post = score_post(S[31])
    mx = [f"v_max3_f32 v{vT}, v{S[0]}, v{S[1]}, v{S[2]}"] + [f"v_max3_f32 v{vT}, v{vT}, v{S[i]}, v{S[i+1]}" for i in range(3, 31, 2)]
    for i, m_ in enumerate(mx):
        a(m_)
        if i in (2, 5, 8, 9, 10, 11, 12, 13): a(post.pop(0))
    a(f"v_max_f32 v{vT}, v{vT}, v{S[31]}")
    reduce_to63("v_max_f32", [vT], start=3)
    vNm, vL = vT + 1, vT + 2
    a(f"s_mov_b32 s{sC}, {fx(LOG2E)}\nv_mul_f32 v{vT}, s{sC}, v{vT}\ns_nop 0\nv_readlane_b32 s{sM}, v{vT}, 63\ns_nop 1\nv_mov_b32 v{vNm}, s{sM}")

    t_f = 29; t_ml = t_f - D - 1
    def p_pair(i):
        r0, r1 = S[i], S[i + 1]
        a(f"v_fma_f32 v{r0}, v{r0}, s{sC}, -v{vNm}\nv_fma_f32 v{r1}, v{r1}, s{sC}, -v{vNm}\nv_exp_f32 v{r0}, v{r0}\nv_exp_f32 v{r1}, v{r1}\ns_nop 0")
        a(f"v_add_f32 v{vL}, v{r0}, v{r1}" if i == 0 else f"v_add_f32 v{vL}, v{vL}, v{r0}\nv_add_f32 v{vL}, v{vL}, v{r1}")
        for k in (i, i + 1):
            if k <= t_f: a(f"v_cvt_pk_bf16_f32 v{S[k]}, v{S[k]}, v{S[k]}")
    p_pair(0)
    vML, vZero, vMLa, vF, vO02, vO1, vOr, vPw, vA16 = vQ, vQ + 4, vQ + 5, vQ + 6, vQ + 7, vQ + 8, vQ + 9, vQ + 10, vQ + 11
    TL = S[0]; vE = S[8]
    def tbl_loads():
        for k in range(4):
            a(f"buffer_load_dwordx4 v[{TL+4*k}:{TL+4*k+3}], v{vA16}, s[{RWS}:{RWS+3}], s{sT+6} offen offset:{1024*k} sc1")
    def ml_load(): a(f"buffer_load_dwordx4 v[{vML}:{vML+3}], v{vMLa}, s[{RWS}:{RWS+3}], s{sT+7} offen sc1")
    for t in range(32):
        n = 32 + t
        a.c(f"V group {t}")
        A = vA + 4 * (t % 2)
        f, r = buf(n)
        build_A(A, S[t])
        last = fine and t == 31
        if not last: wait_group(n)
        a("s_nop 1")
        for j in range(3):
            if last: vm.wait(("ld", 3 * n + j))
            c = "0" if t == 0 else f"v[{vD+4*j}:{vD+4*j+3}]"
            a(f"v_mfma_f32_16x16x32_bf16 v[{vD+4*j}:{vD+4*j+3}], v[{A}:{A+3}], v[{r+4*j}:{r+4*j+3}], {c}")
        fill(3 * n + 3, n + 1)
        wo_hook(n)
        if t < 15: p_pair(2 * t + 2)
        if t == 15:
            a.c("(max, sum) of every wave -> LDS; the wave that arrives last publishes the workgroup's line")
            reduce_to63("v_add_f32", [vL], start=3)
            a(f"""
            v_mov_b32 v{vML}, v{vNm}
            v_mov_b32 v{vML+1}, s{sTA}
            v_mov_b32 v{vML+2}, v{vL}
            v_mov_b32 v{vML+3}, s{sTB}
            v_mov_b32 v{vZero}, 0
            v_lshlrev_b32 v{vA16}, 4, v0
            s_lshl_b32 s{sT}, s{sW}, 4
            v_mov_b32 v{vT}, s{sT}
            v_mov_b32 v{vT+3}, 1
            s_mov_b32 exec_lo, 0
            s_mov_b32 exec_hi, 0x80000000
            ds_write_b128 v{vT}, v[{vML}:{vML+3}] offset:{L_MLW}
            ds_add_rtn_u32 v{vT+3}, v{vZero}, v{vT+3} offset:{L_FLG+4}
            s_waitcnt lgkmcnt(0)
            v_readfirstlane_b32 s{sT}, v{vT+3}
            s_mov_b64 exec, 0xff
            s_cmp_lg_u32 s{sT}, 7
            s_cbranch_scc1 L_mlskip
            ds_read_b128 v[{vML}:{vML+3}], v{vA16} offset:{L_MLW}
            s_waitcnt lgkmcnt(0)
            buffer_store_dwordx4 v[{vML}:{vML+3}], v{vA16}, s[{RWS}:{RWS+3}], s{sML} offen sc1
            L_mlskip:
            s_mov_b64 exec, -1
            """)
        if t == 16:
            a(f"""
            v_and_b32 v{vT}, 15, v0
            v_lshlrev_b32 v{vMLa}, 4, v{vT}
            s_and_b32 s{sT+7}, s{sML}, 0xffffff00
            v_lshrrev_b32 v{vT+2}, 5, v0
            s_lshl_b32 s{sT}, s{sW}, 1
            v_add_u32 v{vO1}, s{sT}, v{vT+2}
            v_mul_u32_u24 v{vO1}, {OSTR}, v{vO1}
            v_bfe_u32 v{vT+3}, v0, 4, 1
            v_lshl_add_u32 v{vO1}, v{vT+3}, 4, v{vO1}
            v_lshl_add_u32 v{vO1}, v{vT}, 5, v{vO1}
            v_lshl_add_u32 v{vO02}, v{vT+2}, 8, v{vO1}
            v_mul_u32_u24 v{vT+2}, 768, v{vT+2}
            v_sub_u32 v{vO1}, v{vO1}, v{vT+2}
            v_add_u32 v{vO1}, 512, v{vO1}
            v_mul_u32_u24 v{vOr}, {OSTR}, v{vT}
            v_lshrrev_b32 v{vT+1}, 4, v0
            v_mul_u32_u24 v{vT+1}, 24, v{vT+1}
            s_mul_i32 s{sT}, s{sW}, 96
            v_add3_u32 v{vOr}, v{vOr}, v{vT+1}, s{sT}
            v_lshlrev_b32 v{vPw}, 5, v{vT}
            v_lshl_add_u32 v{vPw}, v{vT+3}, 4, v{vPw}
            s_mul_i32 s{sT}, s{sW}, {POSTR}
            v_add_u32 v{vPw}, s{sT}, v{vPw}
            """)
        if t == t_tl:
            a.c("reducer workgroups stage the MLP table; valid tags also prove that every output row was reset")
            a(f"s_cmp_eq_u32 s{sRed}, 0\ns_cbranch_scc1 L_tl1\ns_lshl_b32 s{sT+6}, s{sW}, 12\ns_add_u32 s{sT+6}, s{sT+6}, {WS_TBL}")
            tbl_loads()
            a("L_tl1:")
            tl_mark = nxt[0]
        if t == t_tl + 3:
            assert 3 * n + 2 >= tl_mark
            a(f"""
            s_cmp_eq_u32 s{sRed}, 0
            s_cbranch_scc1 L_tl2
            s_and_b32 s{sT+2}, s{sTA}, 0xffff
            s_lshr_b32 s{sT+3}, s{sTA}, 16
            s_mov_b32 s{sT+8}, 0
            s_branch L_tc_chk
            L_tc_retry:
            """)
            tbl_loads()
            a(f"s_waitcnt vmcnt(0)\nL_tc_chk:\nv_mov_b32 v{vT}, 0")
            for k in range(0, 16, 2):
                a(f"v_xor_b32 v{TL+k}, s{sT+2}, v{TL+k}\nv_xor_b32 v{TL+k+1}, s{sT+3}, v{TL+k+1}\nv_or3_b32 v{vT}, v{vT}, v{TL+k}, v{TL+k+1}")
            a(f"v_and_b32 v{vT}, 0xffff, v{vT}\nv_cmp_ne_u32 vcc, 0, v{vT}\ns_cbranch_vccz L_tc_ok")
            spin_guard("L_tc_retry", "L_tc_ok")
            a(f"""
            v_lshrrev_b32 v{vT}, 3, v0
            v_lshlrev_b32 v{vT}, 5, v{vT}
            v_sub_u32 v{vT}, v{vA16}, v{vT}
            s_mul_i32 s{sT}, s{sW}, 3072
            v_add_u32 v{vT}, s{sT}, v{vT}
            s_mov_b32 exec_lo, 0x3f3f3f3f
            s_mov_b32 exec_hi, 0x3f3f3f3f
            """)
            for k in range(4): a(f"ds_write_b128 v{vT}, v[{TL+4*k}:{TL+4*k+3}] offset:{L_TBL + 768*k}")
            a("s_mov_b64 exec, -1\ns_waitcnt lgkmcnt(0)\nL_tl2:")
        if t == t_ml:
            ml_load(); vm.issue("ml")
        if t == t_f:
            assert vm.done("ml")
            a.c("global max / sum of this (b,h): factor = exp2(m_wave - M) / L; rescale what is accumulated, pre-scale the rest")
            a(f"s_mov_b32 s{sT+8}, 0\ns_branch L_ml_chk\nL_ml_retry:")
            ml_load()
            a(f"""
            s_waitcnt vmcnt(0)
            L_ml_chk:
            v_xor_b32 v{vT}, s{sTA}, v{vML+1}
            v_xor_b32 v{vT+1}, s{sTB}, v{vML+3}
            v_or_b32 v{vT}, v{vT}, v{vT+1}
            v_cmp_ne_u32 vcc, 0, v{vT}
            s_cbranch_vccz L_ml_ok
            """)
            spin_guard("L_ml_retry", "L_ml_ok")
            a(f"v_mov_b32 v{vT}, v{vML}")
            row_allreduce("v_max_f32", [vT])
            a(f"""
            v_sub_f32 v{vT+1}, v{vML}, v{vT}
            v_sub_f32 v{vT+2}, s{sM}, v{vT}
            v_exp_f32 v{vT+1}, v{vT+1}
            v_exp_f32 v{vT+2}, v{vT+2}
            v_mul_f32 v{vT+1}, v{vT+1}, v{vML+2}
            """)
            row_allreduce("v_add_f32", [vT+1])
            a(f"v_rcp_f32 v{vT+1}, v{vT+1}\ns_nop 0\nv_mul_f32 v{vF}, v{vT+1}, v{vT+2}")
            for i in range(12): a(f"v_mul_f32 v{vD+i}, v{vF}, v{vD+i}")
            for k in range(t_f + 1, 32): a(f"v_mul_f32 v{S[k]}, v{vF}, v{S[k]}\nv_cvt_pk_bf16_f32 v{S[k]}, v{S[k]}, v{S[k]}")
        if t == 28:
            a.c("masks / index for the 2:4 sparse o @ wo, accumulators, publish addresses")
            a(f"""
            s_mov_b32 s{sT}, 0x0f0f0f0f
            s_mov_b32 s{sT+1}, 0x0f0f0f0f
            v_mov_b32 v{vT}, 0xffff
            v_mov_b32 v{vT+1}, 0xffff0000
            v_cndmask_b32 v{S[0]}, 0, v{vT}, s[{sT}:{sT+1}]
            v_cndmask_b32 v{S[1]}, v{vT}, 0, s[{sT}:{sT+1}]
            v_cndmask_b32 v{S[2]}, 0, v{vT+1}, s[{sT}:{sT+1}]
            v_cndmask_b32 v{S[3]}, v{vT+1}, 0, s[{sT}:{sT+1}]
            v_and_b32 v{S[4]}, 3, v0
            v_mul_u32_u24 v{S[4]}, 0x5555, v{S[4]}
            s_lshl_b32 s{sT}, s{sW}, 10
            v_add_u32 v{S[5]}, s{sT}, v{vA16}
            v_lshrrev_b32 v{S[6]}, 1, v{S[5]}
            v_lshlrev_b32 v{S[7]}, 2, v0
            s_lshl_b32 s{sT+10}, s{sBt}, 6
            s_add_u32 s{sT+10}, s{sT+10}, s{sW}
            s_mul_i32 s{sT+10}, s{sT+10}, 1280
            """)
            for i in range(20): a(f"v_mov_b32 v{vE+i}, 0")
    assert wo_n[0] == 30 and vm.done("wo")
    stamp()

    vR = vB; RB = 84; vA4 = S[7]; sRow = sT + 10
    def row_loads(r):
        b0 = RB + 6 * r
        a(f"""
        s_add_u32 s{sT+2}, s{sRow}, {10240*r}
        buffer_load_dwordx4 v[{b0}:{b0+3}], v{vA16}, s[{RWS}:{RWS+3}], s{sT+2} offen {hld}
        buffer_load_dword v{b0+4}, v{vA4}, s[{RWS}:{RWS+3}], s{sT+2} offen offset:1024 {hld}
        """)
    a.c("sum o over the waves through LDS")
    a(f"""
    s_nop 4
    s_mov_b32 exec_hi, 0
    ds_write_b128 v{vO02}, v[{vD}:{vD+3}] offset:{L_OBUF}
    s_mov_b32 exec_lo, 0x00ff00ff
    s_mov_b32 exec_hi, 0xff00ff00
    ds_write_b128 v{vO1}, v[{vD+4}:{vD+7}] offset:{L_OBUF}
    s_mov_b32 exec_lo, 0
    s_mov_b32 exec_hi, -1
    ds_write_b128 v{vO02}, v[{vD+8}:{vD+11}] offset:{L_OBUF}
    s_mov_b64 exec, -1
    s_cmp_eq_u32 s{sRed}, 0
    s_waitcnt lgkmcnt(0)
    s_barrier
    ds_read_b64 {pr(vR)}, v{vOr} offset:{L_OBUF}
    ds_read_b64 {pr(vR+2)}, v{vOr} offset:{L_OBUF+8}
    ds_read_b64 {pr(vR+4)}, v{vOr} offset:{L_OBUF+16}
    s_cbranch_scc1 L_nor1
    """)
    for r in range(8): row_loads(r)
    a("L_nor1:\ns_waitcnt lgkmcnt(0)")
    AA = [vA, vA + 4, vD]
    def prepS(m_):
        return [f"v_cvt_pk_bf16_f32 v{vR+2*m_}, v{vR+2*m_}, v{vR+2*m_+1}"] + [f"v_and_b32 v{AA[m_]+r}, v{vR+2*m_}, v{S[r]}" for r in range(4)]
    row_allreduce("v_add_f32", [vR, vR + 1, vR + 2])
    fl0 = [dpp("v_add_f32", r, c) for c in ROW4 for r in (vR + 3, vR + 4, vR + 5)]
    pre = prepS(0)
    for x in pre + fl0[:2]: a(x)
    fl = fl0[2:] + prepS(1) + prepS(2)
    per = [3, 3, 3, 3, 3, 2, 2, 1, 0, 0]
    i = 0
    for m_ in range(3):
        for cb in range(5):
            k = 8 * (m_ * 5 + cb)
            if m_ == 1 and cb == 0: a("s_nop 1")
            a(f"v_smfmac_f32_16x16x64_bf16 v[{vE+4*cb}:{vE+4*cb+3}], v[{AA[m_]}:{AA[m_]+3}], a[{k}:{k+7}], v{S[4]}")
            for _ in range(per[i] if i < len(per) else 0): a(fl.pop(0))
            i += 1
    assert not fl
    a(f"s_mov_b32 exec_hi, 0\ns_cmp_lg_u32 s{sRed}, 0\ns_nop 1")
    for cb in range(5): a(f"ds_write_b128 v{vPw}, v[{vE+4*cb}:{vE+4*cb+3}] offset:{L_PO + 512*cb}")
    a(f"""
    s_mov_b64 exec, -1
    s_cbranch_scc1 L_reducer
    s_cmp_ge_u32 s{sW}, 3
    s_waitcnt lgkmcnt(0)
    s_barrier
    """)
    OUT = "L_stamp_out" if stamps else "L_end"
    stamp()
    a(f"s_cbranch_scc1 {OUT}\ns_cmp_lg_u32 s{sW}, 2\ns_cselect_b32 exec_hi, -1, 0")
    for w in range(8): a(f"ds_read_b128 v[{vR+4*w}:{vR+4*w+3}], v{S[5]} offset:{L_PO + w*POSTR}")
    a("s_waitcnt lgkmcnt(0)")
    tree(vR, 4, (0, 2))
    a(f"""
    v_cvt_pk_bf16_f32 v{vR}, v{vR}, v{vR+1}
    v_cvt_pk_bf16_f32 v{vR+1}, v{vR+2}, v{vR+3}
    v_min_u32 v{vR}, -2, v{vR}
    v_min_u32 v{vR+1}, -2, v{vR+1}
    buffer_store_dwordx2 {pr(vR)}, v{S[6]}, s[{RWS}:{RWS+3}], s{sPART} offen {hst}
    s_endpgm
    """)

    AC = 52; vTm = 64
    vW0, vW1, vRd, vSt, vLim, vX0, vY0, v3072, v3071, vLo, vHi, vXa, vXr = vTm+1, vTm+2, vTm+3, vTm+4, vTm+5, vTm+6, vTm+8, vTm+10, vTm+11, vTm+12, vTm+13, vTm+14, vTm+15
    a.c("wave w sums rows w, w+8, ...; its own o @ wo partial (in LDS) is the start value, so the own row is skipped")
    a(f"""
    L_reducer:
    s_mul_i32 s{sT}, s{sW}, {POSTR}
    v_lshl_add_u32 v{vW0}, v0, 5, s{sT}
    v_lshl_add_u32 v{vW1}, v0, 3, s{sT}
    s_waitcnt lgkmcnt(0)
    ds_read_b128 v[{AC}:{AC+3}], v{vW0} offset:{L_PO}
    ds_read_b128 v[{AC+4}:{AC+7}], v{vW0} offset:{L_PO+16}
    ds_read_b64 {pr(AC+8)}, v{vW1} offset:{L_PO+2048}
    s_min_u32 s{sT+2}, s{sW}, 4
    s_lshl_b32 s{sT+2}, s{sT+2}, 8
    v_add_u32 v{vXa}, s{sT+2}, v{vA4}
    v_lshlrev_b32 v{vRd}, 1, v{vXa}
    s_mul_i32 s{sT+1}, s{sBt}, 1280
    v_add_u32 v{vXa}, s{sT+1}, v{vXa}
    buffer_load_dword v{vXr}, v{vXa}, s[{RX}:{RX+3}], 0 offen
    s_mul_i32 s{sT}, s{sW}, 2560
    v_lshl_add_u32 v{vW0}, v0, 5, s{sT}
    v_lshl_add_u32 v{vW1}, v0, 3, s{sT}
    s_lshl_b32 s{sT+1}, s{sW}, 3
    v_mov_b32 v{vSt}, s{sT+1}
    v_mov_b32 v{vLim}, {2300 if force_fb else 3071}
    v_mov_b32 v{v3072}, 3072
    v_mov_b32 v{v3071}, 3071
    v_mov_b32 v{vLo}, 0x3f80
    v_mov_b32 v{vHi}, 0x3f800000
    s_mov_b32 s{sT+7}, 0xff
    s_lshr_b32 s{sT}, s{sP}, 3
    s_and_b32 s{sT+1}, s{sP}, 7
    s_cmp_eq_u32 s{sT+1}, s{sW}
    s_cselect_b32 s{sT}, s{sT}, 8
    s_bitset0_b32 s{sT+7}, s{sT}
    s_mov_b32 s{sT+8}, 0
    s_waitcnt vmcnt(0) lgkmcnt(0)
    v_lshlrev_b32 v{vX0}, 16, v{vXr}
    v_and_b32 v{vX0+1}, 0xffff0000, v{vXr}
    s_branch L_rp_chk
    L_rp_retry:
    """)
    for r in range(8):
        a(f"s_bitcmp1_b32 s{sT+7}, {r}\ns_cbranch_scc0 L_rp_i{r}")
        row_loads(r)
        a(f"L_rp_i{r}:")
    a("s_waitcnt vmcnt(0)\nL_rp_chk:")
    for r in range(8):
        b0 = RB + 6 * r
        a(f"""
        s_bitcmp1_b32 s{sT+7}, {r}
        s_cbranch_scc0 L_rp_c{r}
        v_max3_u32 v{vTm}, v{b0}, v{b0+1}, v{b0+2}
        v_max3_u32 v{vTm}, v{vTm}, v{b0+3}, v{b0+4}
        v_cmp_eq_u32 vcc, -1, v{vTm}
        s_cbranch_vccnz L_rp_c{r}
        s_bitset0_b32 s{sT+7}, {r}
        """)
        for i in range(5): a(f"v_dot2c_f32_bf16 v{AC+2*i}, v{b0+i}, v{vLo}\nv_dot2c_f32_bf16 v{AC+2*i+1}, v{b0+i}, v{vHi}")
        a(f"L_rp_c{r}:")
    a(f"s_cmp_eq_u32 s{sT+7}, 0\ns_cbranch_scc1 L_rp_ok")
    spin_guard("L_rp_retry", "L_rp_ok", 4)
    stamp()
    a(f"""
    s_cmp_ge_u32 s{sW}, 5
    ds_write_b128 v{vW0}, v[{AC}:{AC+3}] offset:{L_RS}
    ds_write_b128 v{vW0}, v[{AC+4}:{AC+7}] offset:{L_RS+16}
    ds_write_b64 v{vW1}, {pr(AC+8)} offset:{L_RS+2048}
    s_waitcnt lgkmcnt(0)
    s_barrier
    """)
    stamp()
    a("s_cbranch_scc1 L_epoch")
    Hh = 20
    a.c("waves 0..4: two columns per lane.  h = bf16(x + bf16(sum)); LayerNorm twice; y = f(t); out = bf16(h + y)")
    for w in range(8): a(f"ds_read_b64 {pr(Hh+2*w)}, v{vRd} offset:{L_RS + 2560*w}")
    a("s_waitcnt lgkmcnt(0)")
    tree(Hh, 2, (0,))
    rnd_bf16_pair(Hh, Hh + 1, Hh + 2)
    a(f"v_pk_add_f32 {pr(Hh)}, {pr(Hh)}, {pr(vX0)}")
    rnd_bf16_pair(Hh, Hh + 1, Hh + 2)
    s1, s2 = Hh + 4, Hh + 5
    a(f"v_mul_f32 v{s2}, v{Hh}, v{Hh}\nv_add_f32 v{s1}, v{Hh}, v{Hh+1}\nv_fmac_f32 v{s2}, v{Hh+1}, v{Hh+1}")
    reduce_to63("v_add_f32", [s1, s2])
    a(f"""
    s_mov_b32 exec_lo, 0
    s_mov_b32 exec_hi, 0x80000000
    ds_write_b64 v{vSt}, {pr(s1)} offset:{L_ST}
    s_mov_b64 exec, -1
    s_waitcnt lgkmcnt(0)
    s_barrier
    ds_read_b128 v[{Hh+8}:{Hh+11}], v{vZero} offset:{L_ST}
    ds_read_b128 v[{Hh+12}:{Hh+15}], v{vZero} offset:{L_ST+16}
    ds_read_b64 {pr(Hh+16)}, v{vZero} offset:{L_ST+32}
    s_waitcnt lgkmcnt(0)
    v_pk_add_f32 {pr(Hh+8)}, {pr(Hh+8)}, {pr(Hh+10)}
    v_pk_add_f32 {pr(Hh+12)}, {pr(Hh+12)}, {pr(Hh+14)}
    v_pk_add_f32 {pr(Hh+8)}, {pr(Hh+8)}, {pr(Hh+16)}
    v_pk_add_f32 {pr(Hh+8)}, {pr(Hh+8)}, {pr(Hh+12)}
    """)
    mean, var, m1, r1, y = Hh + 8, Hh + 9, Hh + 10, Hh + 11, Hh + 12
    a(f"""
    v_mul_f32 v{mean}, {fx(1.0/640)}, v{mean}
    v_mul_f32 v{var}, {fx(1.0/640)}, v{var}
    v_fma_f32 v{var}, -v{mean}, v{mean}, v{var}
    v_cvt_pk_bf16_f32 v{m1}, v{mean}, v{mean}
    v_max_f32 v{var}, 0, v{var}
    v_and_b32 v{m1}, 0xffff0000, v{m1}
    v_mov_b32 v{r1}, v{var}
    """)
    den_chain(r1)
    a.c("mean / variance of the first LayerNorm's output follow from its own statistics")
    a(f"""
    v_sub_f32 v{y}, v{Hh}, v{m1}
    v_sub_f32 v{y+1}, v{Hh+1}, v{m1}
    v_sub_f32 v{mean}, v{mean}, v{m1}
    v_mul_f32 v{var}, v{var}, v{r1}
    v_mul_f32 v{mean}, v{mean}, v{r1}
    v_mul_f32 v{var}, v{var}, v{r1}
    """)
    rnd_bf16_pair(y, y + 1, m1); rnd_bf16(mean); den_chain(var)
    a(f"v_mul_f32 v{y}, v{y}, v{r1}\nv_mul_f32 v{y+1}, v{y+1}, v{r1}")
    rnd_bf16_pair(y, y + 1, m1)
    a(f"v_sub_f32 v{y}, v{y}, v{mean}\nv_sub_f32 v{y+1}, v{y+1}, v{mean}")
    rnd_bf16_pair(y, y + 1, m1)
    tb, i0_, i1_ = Hh + 14, Hh + 16, Hh + 17
    a(f"""
    v_mul_f32 v{y}, v{y}, v{var}
    v_mul_f32 v{y+1}, v{y+1}, v{var}
    v_cvt_pk_bf16_f32 v{tb}, v{y}, v{y+1}
    v_and_b32 v{y}, 0x7fff, v{tb}
    v_bfe_u32 v{y+1}, v{tb}, 16, 15
    v_bfe_u32 v{m1}, v{tb}, 15, 1
    v_lshrrev_b32 v{r1}, 31, v{tb}
    v_subrev_u32 v{i0_}, {MAG0}, v{y}
    v_subrev_u32 v{i1_}, {MAG0}, v{y+1}
    v_cmp_lt_u32 s[{sT}:{sT+1}], v{i0_}, v{vLim}
    v_cmp_lt_u32 s[{sT+2}:{sT+3}], v{i1_}, v{vLim}
    v_mad_u32_u24 v{i0_}, v{m1}, v{v3072}, v{i0_}
    v_mad_u32_u24 v{i1_}, v{r1}, v{v3072}, v{i1_}
    v_cndmask_b32 v{i0_}, v{v3071}, v{i0_}, s[{sT}:{sT+1}]
    v_cndmask_b32 v{i1_}, v{v3071}, v{i1_}, s[{sT+2}:{sT+3}]
    v_lshlrev_b32 v{i0_}, 2, v{i0_}
    v_lshlrev_b32 v{i1_}, 2, v{i1_}
    ds_read_b32 v{vY0}, v{i0_} offset:{L_TBL}
    ds_read_b32 v{vY0+1}, v{i1_} offset:{L_TBL}
    v_cmp_eq_u32 s[{sT+4}:{sT+5}], 0, v{y}
    v_cmp_eq_u32 vcc, 0, v{y+1}
    s_or_b64 s[{sT}:{sT+1}], s[{sT}:{sT+1}], s[{sT+4}:{sT+5}]
    s_or_b64 s[{sT+2}:{sT+3}], s[{sT+2}:{sT+3}], vcc
    s_and_b64 s[{sT+4}:{sT+5}], s[{sT}:{sT+1}], s[{sT+2}:{sT+3}]
    s_cmp_eq_u64 s[{sT+4}:{sT+5}], -1
    s_waitcnt lgkmcnt(0)
    s_cbranch_scc0 L_fb
    L_fin:
    v_pk_add_f32 {pr(Hh)}, {pr(Hh)}, {pr(vY0)}
    v_cvt_pk_bf16_f32 v{Hh}, v{Hh}, v{Hh+1}
    global_store_dword v{vXa}, v{Hh}, s[24:25]
    {"s_branch L_stamp_out" if stamps else "s_endpgm"}
    """)
    a.c("every workgroup has read the epoch by now (all table lines carried this launch's tag): advance it")
    a(f"""
    L_epoch:
    s_cmp_lg_u32 s{sBt}, 0
    s_cbranch_scc1 L_end
    s_cmp_lg_u32 s{sW}, 7
    s_cbranch_scc1 L_end
    s_add_u32 s{sE}, s{sE}, 1
    s_addc_u32 s{sE+1}, s{sE+1}, 0
    v_mov_b32 v{Hh+2}, s{sE}
    v_mov_b32 v{Hh+3}, s{sE+1}
    s_mov_b32 s{sT}, {WS_EP}
    s_mov_b64 exec, 1
    buffer_store_dwordx2 {pr(Hh+2)}, v{vZero}, s[{RWS}:{RWS+3}], s{sT} offen sc1
    s_endpgm
    """)
    a.c("inputs outside the table are evaluated directly, one element at a time, by the whole wave")
    F = Hh + 20
    a(f"L_fb:\ns_load_dword s{sT+9}, s[22:23], 0\ns_waitcnt lgkmcnt(0)\ns_lshl_b32 s{sT+9}, s{sT+9}, 16")
    for j in range(2):
        mk = sT + 2 * j
        a(f"""
        s_not_b64 s[{mk}:{mk+1}], s[{mk}:{mk+1}]
        L_fb_next{j}:
        s_cmp_eq_u64 s[{mk}:{mk+1}], 0
        s_cbranch_scc1 L_fb_done{j}
        s_ff1_i32_b64 s{sT+6}, s[{mk}:{mk+1}]
        s_bitset0_b64 s[{mk}:{mk+1}], s{sT+6}
        v_readlane_b32 s{sT+7}, v{tb}, s{sT+6}
        v_lshlrev_b32 v{F}, 1, v0
        v_mov_b32 v{F+1}, 0
        {f"s_lshl_b32 s{sT+7}, s{sT+7}, 16" if j == 0 else f"s_and_b32 s{sT+7}, s{sT+7}, 0xffff0000"}
        s_mov_b32 s{sT+8}, 0
        L_fb_loop{j}:
        global_load_ushort v{F+2}, v{F}, s[16:17]
        global_load_ushort v{F+3}, v{F}, s[18:19]
        global_load_ushort v{F+4}, v{F}, s[20:21]
        v_add_u32 v{F}, 128, v{F}
        s_waitcnt vmcnt(0)
        v_lshlrev_b32 v{F+2}, 16, v{F+2}
        v_lshlrev_b32 v{F+3}, 16, v{F+3}
        v_lshlrev_b32 v{F+4}, 16, v{F+4}
        v_mul_f32 v{F+2}, s{sT+7}, v{F+2}
        """)
        rnd_bf16(F + 2); a(f"v_add_f32 v{F+2}, v{F+2}, v{F+3}"); rnd_bf16(F + 2)
        a(f"""
        v_mul_f32 v{F+3}, v{F+2}, v{F+2}
        v_mov_b32 v{F+5}, {fx(cA)}
        v_fmac_f32 v{F+5}, {fx(cA * 0.044715)}, v{F+3}
        v_mul_f32 v{F+5}, v{F+5}, v{F+2}
        v_exp_f32 v{F+5}, v{F+5}
        s_nop 0
        v_add_f32 v{F+5}, 1.0, v{F+5}
        v_rcp_f32 v{F+5}, v{F+5}
        s_nop 0
        v_mul_f32 v{F+2}, v{F+2}, v{F+5}
        """)
        rnd_bf16(F + 2)
        a(f"v_fmac_f32 v{F+1}, v{F+2}, v{F+4}\ns_add_u32 s{sT+8}, s{sT+8}, 1\ns_cmp_lt_u32 s{sT+8}, 24\ns_cbranch_scc1 L_fb_loop{j}")
        reduce_to63("v_add_f32", [F + 1])
        rnd_bf16(F + 1); a(f"v_add_f32 v{F+1}, s{sT+9}, v{F+1}"); rnd_bf16(F + 1)
        a(f"""
        s_nop 0
        v_readlane_b32 s{sT+7}, v{F+1}, 63
        s_mov_b32 m0, s{sT+6}
        s_nop 1
        v_writelane_b32 v{vY0+j}, s{sT+7}, m0
        s_branch L_fb_next{j}
        L_fb_done{j}:
        """)
    a("s_branch L_fin")
    if stamps:
        a(f"L_stamp_out:\ns_cmp_lg_u32 s{sW}, 4\ns_cbranch_scc1 L_end\ns_waitcnt vmcnt(0)")
        stamp()
        assert nst[0] == 8, nst
        a(f"s_waitcnt lgkmcnt(0)\ns_lshl_b32 s{sT}, s2, 6\ns_add_u32 s{sT}, s{sT}, {WS - (1<<20)}\ns_mov_b64 exec, 1\nv_mov_b32 v{vT}, s{sT}")
        for i in range(16): a(f"v_mov_b32 v{vB+i}, s{sST+i}")
        for i in range(4): a(f"global_store_dwordx4 v{vT}, v[{vB+4*i}:{vB+4*i+3}], s[28:29] offset:{16*i}")
    a("L_end:\ns_endpgm")
    body = "\n".join(l for l in a.text().split("\n") if l.strip()) + "\n"
    txt = (HEADER + f"; @launch grid=(256,1,1) block=(512,1,1) lds={LDS_BYTES}\n" + DOC + '.amdgcn_target "amdgcn-amd-amdhsa--gfx950"\n'
           + kernel_head(NAME) + body + kernel_desc(NAME, 256, 102, ACC))
    open(path, "w").write(txt)
    import hazard
    assert hazard.check(path) == 0
    return build(path, NAME)

if __name__ == "__main__":
    cfgs = eval(sys.argv[1])
    for nm, c in cfgs.items(): gen(nm + ".s", **c)
    base = ["dev/host", "dev/host2", "dev/ab.sh", "dev/agg.py", "dev/thrash.co", "dev/run.sh", "dev/mkref.py", "dev/cmp.py", "sequential_preLN__mha_block_cached__mixer_token_mlp__decode_np.py"]
    print(" ".join(cfgs.keys()))
    print(str(base + [f"dev/{n}.{e}" for n in cfgs for e in ("co", "spec")]).replace("'", '"'))
```
